```python
import torch

def _softmax(x, axis=-1):
    return torch.softmax(x, dim=axis)
def _gelu(x):
    return torch.nn.functional.gelu(x, approximate="tanh")
def _silu(x):
    return torch.nn.functional.silu(x)
def _sigmoid(x):
    return torch.sigmoid(x)
def _layernorm(x, axis=-1, eps=1e-5):
    m = x.mean(dim=axis, keepdim=True)
    v = x.var(dim=axis, keepdim=True, unbiased=False)
    return (x - m) / torch.sqrt(v + eps)
def _scatter_add(tgt, idx, src, axis=0):
    return tgt.clone().index_add_(axis, idx, src)
def _segment_sum(src, seg, n):
    out = torch.zeros((n,) + src.shape[1:], dtype=src.dtype)
    return out.index_add_(0, seg, src)
def _pad(x, pw):
    flat = tuple(v for pair in reversed(pw) for v in pair)
    return torch.nn.functional.pad(x, flat)

kernel_name = 'interleave_layers__sliding_local_dilated__linear_kernel_hedgehog__prompt'

def setup_inputs():

    _w = (lambda a: (lambda t: t.to(torch.bfloat16) if t.is_floating_point() else t)(torch.as_tensor(a)))
    def _A_setup():
        B, S, D = 1, 2048, 1024
        return {
            "x": _w((lambda *s: torch.randn(*s, dtype=torch.bfloat16) * 0.05)(B, S, D)),
            "wqkv": _w((lambda *s: torch.randn(*s, dtype=torch.bfloat16) * 0.05)(D, 3 * D)),
            "wo": _w((lambda *s: torch.randn(*s, dtype=torch.bfloat16) * 0.05)(D, D)),
        }
    _A_in = _A_setup()

    def _B_setup():
        B, S, D, H = 1, 2048, 1024, 32
        Dh = D // H
        return {
            "x": _w((lambda *s: torch.randn(*s, dtype=torch.bfloat16) * 0.05)(B, S, D)),
            "wqkv": _w((lambda *s: torch.randn(*s, dtype=torch.bfloat16) * 0.4)(D, 3 * D)),
            "w_phi": _w((lambda *s: torch.randn(*s, dtype=torch.bfloat16) * 0.4)(H, Dh, Dh) * (Dh ** -0.5)),
            "wo": _w((lambda *s: torch.randn(*s, dtype=torch.bfloat16) * 0.1)(D, D)),
        }
    _B_in = _B_setup()

    return {
        "A_x": _A_in["x"],
        "A_wqkv": _A_in["wqkv"],
        "A_wo": _A_in["wo"],
        "B_x": _B_in["x"],
        "B_wqkv": _B_in["wqkv"],
        "B_w_phi": _B_in["w_phi"],
        "B_wo": _B_in["wo"],
    }

def reference(A_x, A_wqkv, A_wo, B_x, B_wqkv, B_w_phi, B_wo):
    def _A_ref(x, wqkv, wo):
        B, S, D = x.shape
        H = 32; Dh = D // H
        W, dil = 8, 2
        qkv = (lambda x, *d: x.permute(*d))((x @ wqkv).reshape(B, S, 3, H, Dh), 2, 0, 3, 1, 4)
        q, k, v = qkv[0], qkv[1], qkv[2]
        scale = Dh ** -0.5
        pos = torch.arange(S)
        off = torch.arange(W) * dil
        idx = pos[:, None] - off[None, :]
        mask = idx >= 0
        idx_c = torch.where(mask, idx, 0).reshape(-1)
        kg = k[:, :, idx_c, :].reshape(B, H, S, W, Dh)
        vg = v[:, :, idx_c, :].reshape(B, H, S, W, Dh)
        logits = torch.einsum("bhsd,bhswd->bhsw", q, kg) * scale
        logits = torch.where(mask[None, None, :, :], logits, -1e9)
        attn = _softmax(logits, axis=-1)
        o = torch.einsum("bhsw,bhswd->bhsd", attn, vg)
        return (lambda x, *d: x.permute(*d))(o, 0, 2, 1, 3).reshape(B, S, D) @ wo

    def _B_ref(x, wqkv, w_phi, wo):
        B, S, D = x.shape
        H = 32; Dh = D // H
        qkv = (lambda x, *d: x.permute(*d))((x @ wqkv).reshape(B, S, 3, H, Dh), 2, 0, 3, 1, 4)
        q, k, v = qkv[0], qkv[1], qkv[2]
        pq = torch.einsum("bhsd,hdf->bhsf", q, w_phi)
        pk = torch.einsum("bhsd,hdf->bhsf", k, w_phi)
        phi_q = torch.concatenate([_softmax(pq, axis=-1), _softmax(-pq, axis=-1)], axis=-1)
        phi_k = torch.concatenate([_softmax(pk, axis=-1), _softmax(-pk, axis=-1)], axis=-1)
        kv = torch.einsum("bhsf,bhsd->bhfd", phi_k, v)
        z  = torch.einsum("bhsf->bhf", phi_k)
        num = torch.einsum("bhqf,bhfd->bhqd", phi_q, kv)
        den = torch.einsum("bhqf,bhf->bhq", phi_q, z)[..., None] + 1e-6
        o = num / den
        return (lambda x, *d: x.permute(*d))(o, 0, 2, 1, 3).reshape(B, S, D) @ wo

    x = A_x
    x = x + _A_ref(_layernorm(x, axis=-1), A_wqkv, A_wo)
    x = x + _B_ref(_layernorm(x, axis=-1), B_wqkv, B_w_phi, B_wo)
    x = x + _A_ref(_layernorm(x, axis=-1), A_wqkv, A_wo)
    x = x + _B_ref(_layernorm(x, axis=-1), B_wqkv, B_w_phi, B_wo)
    return x
```

```python
class Asm:
    def __init__(self):
        self.lines = []
        self.uid = 0
    def __call__(self, s=""):
        for l in s.split("\n"):
            self.lines.append(l)
    def label(self, name):
        self.lines.append(name + ":")
    def newlabel(self, p="L"):
        self.uid += 1
        return f"{p}_{self.uid}"
    def text(self):
        return "\n".join(self.lines) + "\n"

def kernel_header(name):
    return f""".text
.globl {name}
.p2align 8
.type {name},@function
{name}:"""

def kernel_desc(name, vgpr, sgpr=102, accum=None, agpr=0):
    if accum is None:
        accum = (vgpr + 3) // 4 * 4
    nfv = accum + agpr if agpr else vgpr
    return f""".section .rodata,"a"
.p2align 6
.amdhsa_kernel {name}
  .amdhsa_next_free_vgpr {nfv}
  .amdhsa_next_free_sgpr {sgpr}
  .amdhsa_accum_offset {accum}
  .amdhsa_group_segment_fixed_size 0
  .amdhsa_kernarg_size 80
  .amdhsa_user_sgpr_count 2
  .amdhsa_user_sgpr_kernarg_segment_ptr 1
  .amdhsa_system_sgpr_workgroup_id_x 1
.end_amdhsa_kernel
"""
def vr(b, n=1): return f"v{b}" if n == 1 else f"v[{b}:{b+n-1}]"
def ar(b, n=1): return f"a{b}" if n == 1 else f"a[{b}:{b+n-1}]"
def sr(b, n=1): return f"s{b}" if n == 1 else f"s[{b}:{b+n-1}]"

def srd(a, d, base, nbytes):
    a(f"s_mov_b32 s{d}, s{base}")
    a(f"s_and_b32 s{d+1}, s{base+1}, 0xffff")
    a(f"s_mov_b32 s{d+2}, {nbytes}")
    a(f"s_mov_b32 s{d+3}, 0x00020000")

def interleave(main, fill, start=0, every=None):
    out = []
    n = len(main); m = len(fill)
    slots = n - start
    k = 0
    for i, x in enumerate(main):
        out.append(x)
        if i >= start:
            want = (m * (i - start + 1) + slots - 1) // slots
            while k < want and k < m:
                out.append(fill[k]); k += 1
    out += fill[k:]
    return out
```

```python
import sys
from asmlib import *
STAMP_OFF = 200 << 20

def prologue(a):
    a("s_cmp_ge_u32 s2, 256")
    a("s_cbranch_scc1 L_end")
    a("s_load_dwordx4 s[4:7], s[0:1], 0")
    a("s_load_dwordx2 s[8:9], s[0:1], 72")
    a("s_memrealtime s[40:41]")
    a("s_memtime s[42:43]")
    a("s_waitcnt lgkmcnt(0)")
    srd(a, 12, 4, 4194304)
    srd(a, 16, 6, 6291456)
    srd(a, 20, 8, 268435456)
    a("v_lshrrev_b32 v1, 6, v0")
    a("s_nop 0")
    a("v_readfirstlane_b32 s24, v1")
    a("v_and_b32 v2, 63, v0")
    a("s_and_b32 s25, s2, 7")
    a("s_lshr_b32 s26, s2, 3")

def epilogue(a):
    a("s_waitcnt vmcnt(0)")
    a("s_barrier")
    a("s_memrealtime s[44:45]")
    a("s_memtime s[46:47]")
    a("s_getreg_b32 s48, hwreg(HW_REG_XCC_ID)")
    a("s_waitcnt lgkmcnt(0)")
    a("s_cmp_lg_u32 s24, 0")
    a("s_cbranch_scc1 L_end")
    a("v_mov_b32 v4, s40"); a("v_mov_b32 v5, s44"); a("v_mov_b32 v6, s42"); a("v_mov_b32 v7, s46")
    a("v_mov_b32 v8, s48")
    a("s_lshl_b32 s3, s2, 5")
    a(f"s_add_u32 s3, s3, {STAMP_OFF}")
    a("v_mov_b32 v3, s3")
    a("v_cmp_eq_u32 vcc, 0, v0")
    a("s_and_saveexec_b64 s[50:51], vcc")
    a("buffer_store_dwordx4 v[4:7], v3, s[20:23], 0 offen")
    a("buffer_store_dword v8, v3, s[20:23], 0 offen offset:16")
    a("s_waitcnt vmcnt(0)")
    a("L_end:")
    a("s_endpgm")

def gen(mode, reps=1):
    a = Asm()
    a("; @launch kernel=mb_kernel grid=(256,1,1) block=(256,1,1) lds=131072")
    a('.amdgcn_target "amdgcn-amd-amdhsa--gfx950"')
    a(kernel_header("mb_kernel"))
    prologue(a)
    xmode, wmode = mode
    a("s_lshl_b32 s27, s25, 19")
    if xmode in ("lin", "lindma"):
        a("s_lshl_b32 s28, s24, 17"); a("s_add_u32 s27, s27, s28")
        a("v_lshlrev_b32 v10, 4, v2")
        xk = 1024; nx = 4
    elif xmode == "nat":
        a("s_lshl_b32 s28, s24, 17"); a("s_add_u32 s27, s27, s28")
        a("v_and_b32 v3, 15, v2"); a("v_lshlrev_b32 v10, 11, v3")
        a("v_lshrrev_b32 v3, 4, v2"); a("v_lshlrev_b32 v3, 4, v3"); a("v_add_u32 v10, v10, v3")
        xk = 64; nx = 4
    elif xmode == "lindma128":
        a("s_and_b32 s28, s26, 1"); a("s_lshl_b32 s28, s28, 18"); a("s_add_u32 s27, s27, s28")
        a("s_lshl_b32 s28, s24, 16"); a("s_add_u32 s27, s27, s28")
        a("v_lshlrev_b32 v10, 4, v2")
        xk = 1024; nx = 2
    else:
        nx = 0; xk = 0
        a("v_mov_b32 v10, 0")
    a("v_add_u32 v10, s27, v10")
    for t in range(1, 4):
        a(f"v_add_u32 v{10+t}, {t*32768}, v10")
    if wmode == "w64":
        a("v_lshrrev_b32 v3, 2, v2"); a("s_lshl_b32 s28, s24, 4"); a("v_add_u32 v3, s28, v3")
        a("v_mul_u32_u24 v20, 6144, v3")
        a("v_and_b32 v3, 3, v2"); a("v_lshlrev_b32 v3, 4, v3"); a("v_add_u32 v20, v20, v3")
        a("s_lshl_b32 s28, s26, 6"); a("v_add_u32 v20, s28, v20")
        a("v_add_u32 v21, 2048, v20"); a("v_add_u32 v22, 4096, v20")
        nw = 3
    elif wmode == "w128":
        a("v_lshrrev_b32 v3, 3, v2"); a("s_lshl_b32 s28, s24, 4"); a("v_add_u32 v3, s28, v3")
        a("v_mul_u32_u24 v20, 6144, v3")
        a("v_and_b32 v3, 7, v2"); a("v_lshlrev_b32 v3, 4, v3"); a("v_add_u32 v20, v20, v3")
        a("s_lshr_b32 s28, s26, 1"); a("s_lshl_b32 s28, s28, 7"); a("v_add_u32 v20, s28, v20")
        a("v_add_u32 v21, 2048, v20"); a("v_add_u32 v22, 4096, v20")
        for t in range(3): a(f"v_add_u32 v{23+t}, {8*6144}, v{20+t}")
        nw = 6
    else:
        nw = 0
    a("s_lshl_b32 s29, s24, 15")
    a(f"s_mov_b32 s33, {reps}")
    a("L_rep:")
    a("s_mov_b32 s30, 0")
    a("s_mov_b32 s31, 0")
    a("s_mov_b32 s32, 0")
    a("L_loop:")
    per = 2 * nx + nw
    depth = 3 if per * 4 > 63 else 4
    if per * 3 > 63: depth = 2
    UN = 4
    for u in range(UN):
        slot = 0
        for ks in range(2):
            for t in range(nx):
                if xmode in ("lin", "nat"):
                    r = 32 + ((u * 2 + ks) * 4 + t) * 4
                    a(f"buffer_load_dwordx4 v[{r}:{r+3}], v{10+t}, s[12:15], s30 offen")
                else:
                    a(f"s_add_u32 m0, s29, {((u*16+slot)%32)*1024}"); slot += 1
                    a("s_nop 0")
                    a(f"buffer_load_dwordx4 v{10+t}, s[12:15], s30 offen lds")
            if nx: a(f"s_add_u32 s30, s30, {xk}")
        for t in range(nw):
            a(f"s_add_u32 m0, s29, {((u*16+slot)%32)*1024}"); slot += 1
            a("s_nop 0")
            a(f"buffer_load_dwordx4 v{20+t}, s[16:19], s31 offen lds")
        a(f"s_add_u32 s31, s31, {64*6144}")
        a(f"s_waitcnt vmcnt({min(63, per*(UN-1))})")
    a("s_add_u32 s32, s32, 1")
    a(f"s_cmp_lt_u32 s32, {16//UN}")
    a("s_cbranch_scc1 L_loop")
    a("s_sub_u32 s33, s33, 1")
    a("s_cmp_lg_u32 s33, 0")
    a("s_cbranch_scc1 L_rep")
    epilogue(a)
    a(kernel_desc("mb_kernel", 256))
    byts = (2 * nx + nw) * 1024 * 4 * 16 * reps
    return a.text(), byts

if __name__ == "__main__":
    import json
    meta = {}
    for mode in [("lin", ""), ("lindma", ""), ("nat", ""), ("", "w64"), ("", "w128"), ("lin", "w64"), ("lindma128", "w128"), ("nat", "w64")]:
        for reps in (1, 4):
            t, b = gen(mode, reps)
            fn = f"t/mb1_{mode[0]}_{mode[1]}_{reps}.s"
            open(fn, "w").write(t); meta[fn] = b
    json.dump(meta, open("t/mb1.json", "w"))
```

```python
import sys
from asmlib import *
from mb1 import prologue, epilogue
def gen(nact, stride, seg, buf, order, fl='', dma=1):
    a = Asm()
    a(f"; @launch kernel=mb_kernel grid=(256,1,1) block=(256,1,1) lds=131072")
    a('.amdgcn_target "amdgcn-amd-amdhsa--gfx950"')
    a(kernel_header("mb_kernel"))
    prologue(a)
    import math
    a(f"s_cmp_ge_u32 s2, {nact}")
    a("s_cbranch_scc1 L_skip")
    lanes_per = seg // 16; nseg = 64 // lanes_per
    a(f"v_lshrrev_b32 v3, {int(math.log2(lanes_per))}, v2")
    a(f"s_mul_i32 s28, s24, {nseg}"); a("v_add_u32 v3, s28, v3")
    a(f"s_mov_b32 s28, {stride}"); a("v_mul_lo_u32 v20, s28, v3")
    a(f"v_and_b32 v3, {lanes_per-1}, v2"); a("v_lshlrev_b32 v3, 4, v3"); a("v_add_u32 v20, v20, v3")
    a(f"s_mul_i32 s31, s2, {seg}")
    a(f"s_lshl_b32 s29, s24, 13")
    a("s_mov_b32 s32, 0")
    srdn = {"w": "s[16:19]", "ws": "s[20:23]"}[buf]
    total_rows = 6291456 // stride
    a("L_loop:")
    if order == "seq":
        for u in range(6):
            a(f"s_add_u32 m0, s29, {u*1024}"); a("s_nop 0")
            a(f"buffer_load_dwordx4 v20, {srdn}, s31 offen lds")
            a(f"s_add_u32 s31, s31, {4*nseg*stride}")
        iters = total_rows // (4 * nseg * 6); nb = iters * 6 * 4096
    else:
        for u in range(2):
            for t in range(3):
                a(f"s_add_u32 m0, s29, {(u*3+t)*1024}"); a(f"s_add_u32 s30, s31, {t*2048}")
                a(f"buffer_load_dwordx4 v20, {srdn}, s30 offen {fl} lds" if dma else f"buffer_load_dwordx4 v[{32+4*(u*3+t)}:{35+4*(u*3+t)}], v20, {srdn}, s30 offen {fl}")
            a(f"s_add_u32 s31, s31, {4*nseg*stride}")
        iters = total_rows // (4 * nseg * 2); nb = iters * 6 * 4096
    a("s_waitcnt vmcnt(24)")
    a("s_add_u32 s32, s32, 1")
    a(f"s_cmp_lt_u32 s32, {iters}")
    a("s_cbranch_scc1 L_loop")
    a("L_skip:")
    epilogue(a)
    a(kernel_desc("mb_kernel", 64))
    return a.text(), nb

if __name__ == "__main__":
    import json
    meta = {}
    for cfg in [(16,6144,128,"w","qkv",""),(16,6144,128,"w","qkv","sc1"),(16,6144,128,"w","qkv","sc0"),(16,6144,128,"w","qkv","nt"),(16,6144,128,"w","qkv","sc0 sc1"),(16,6144,128,"w","qkv","sc0 nt"),(16,6144,128,"w","qkv","sc1 nt"),(16,6144,128,"w","qkv","sc0 sc1 nt"),(16,6144,128,"w","qkv","",0)]:
        t, b = gen(*cfg)
        fn = "t/mb5_" + "_".join(str(c).replace(" ", "") for c in cfg) + "_mb8.s"
        open(fn, "w").write(t); meta[fn] = b
    json.dump(meta, open("t/mb8.json", "w"))
```

```python
import sys
from asmlib import *
from mb1 import prologue, epilogue
def gen(nact, st, delay, width):
    a = Asm()
    a(f"; @launch kernel=mb_kernel grid=(256,1,1) block=(256,1,1) lds=131072")
    a('.amdgcn_target "amdgcn-amd-amdhsa--gfx950"')
    a(kernel_header("mb_kernel"))
    prologue(a)
    a(f"s_cmp_ge_u32 s2, {nact}"); a("s_cbranch_scc1 L_skip")
    a("v_lshlrev_b32 v20, 4, v0")
    a("s_lshl_b32 s31, s2, 15")
    a("s_add_u32 s35, s31, 0x7000"); a("buffer_load_dwordx4 v[40:43], v20, s[20:23], s35 offen")
    a("s_waitcnt vmcnt(0)"); a("s_barrier")
    if st != "none":
        a("s_mov_b32 s30, s31")
        for u in range(4):
            a(f"buffer_store_dwordx4 v[40:43], v20, s[20:23], s30 offen {st}"); a("s_add_u32 s30, s30, 4096")
        a("s_waitcnt vmcnt(0)")
    if delay: a(f"s_sleep {delay}")
    a("s_barrier")
    a("s_memtime s[60:61]"); a("s_waitcnt lgkmcnt(0)")
    a("s_mov_b32 s30, s31")
    for u in range(4):
        a(f"buffer_load_dwordx4 v[{44+4*u}:{47+4*u}], v20, s[20:23], s30 offen sc1"); a("s_add_u32 s30, s30, 4096")
    a("s_waitcnt vmcnt(0)"); a("s_barrier")
    a("s_memtime s[62:63]"); a("s_waitcnt lgkmcnt(0)")
    a("s_sub_u32 s60, s62, s60")
    a("s_lshl_b32 s3, s2, 5"); a(f"s_add_u32 s3, s3, {(200<<20)+20}"); a("v_mov_b32 v3, s3"); a("v_mov_b32 v4, s60")
    a("buffer_store_dword v4, v3, s[20:23], 0 offen")
    a("L_skip:")
    epilogue(a)
    a(kernel_desc("mb_kernel", 64))
    return a.text(), 1
if __name__ == "__main__":
    import json
    meta = {}
    for nact in (8, 256):
        for (st, d) in (("none", 0), ("", 0), ("", 8), ("", 64), ("sc0", 0), ("nt", 0), ("sc1", 0), ("sc0 nt", 0)):
            t, b = gen(nact, st, d, 4)
            fn = f"t/mb5_{nact}_{st.replace(' ','')}_{d}_mb17.s"
            open(fn, "w").write(t); meta[fn] = b
    json.dump(meta, open("t/mb17.json", "w"))
```

```python
import re, sys
def regs(tok):
    tok = tok.strip().lstrip("-").replace("abs(", "").replace(")", "")
    m = re.fullmatch(r"v(\d+)", tok)
    if m: return {int(m.group(1))}
    m = re.fullmatch(r"v\[(\d+):(\d+)\]", tok)
    if m: return set(range(int(m.group(1)), int(m.group(2)) + 1))
    return set()
def sregs(tok):
    tok = tok.strip()
    if tok == "vcc": return {"vcc"}
    if tok in ("vcc_lo", "vcc_hi"): return {"vcc"}
    m = re.fullmatch(r"s(\d+)", tok)
    if m: return {int(m.group(1))}
    m = re.fullmatch(r"s\[(\d+):(\d+)\]", tok)
    if m: return set(range(int(m.group(1)), int(m.group(2)) + 1))
    return set()
TRANS = ("v_exp_f32", "v_log_f32", "v_rcp_f32", "v_rsq_f32", "v_sqrt_f32")
class I: pass
def parse(line):
    line = line.split(";")[0].strip()
    if not line or line.endswith(":") or line.startswith((".", "@")): return None
    p = line.split(None, 1); op = p[0]
    ops = [x.strip() for x in re.split(r",(?![^\[]*\])", p[1])] if len(p) > 1 else []
    ops = [o.split()[0] if o else o for o in ops]
    i = I(); i.op = op; i.line = line; i.vd = set(); i.vs = set(); i.sd = set(); i.ss = set(); i.c = set()
    i.mfma = op.startswith("v_mfma"); i.valu = op.startswith("v_") and not i.mfma
    i.mem = op.startswith(("buffer_", "global_", "ds_"))
    i.states = int(ops[0]) + 1 if op == "s_nop" else 1
    if i.mfma:
        i.vd = regs(ops[0]); i.vs = regs(ops[1]) | regs(ops[2]); i.c = regs(ops[3])
    elif i.valu:
        if op.startswith(("v_cmp", "v_readfirstlane", "v_readlane")):
            i.sd = sregs(ops[0]); rest = ops[1:]
        else:
            i.vd = regs(ops[0]); rest = ops[1:]
        for o in rest: i.vs |= regs(o); i.ss |= sregs(o)
        if op.startswith("v_permlane"): i.vd |= regs(ops[1]); i.vs |= regs(ops[0])
        if op.startswith(("v_dot2c", "v_fmac", "v_writelane")): i.vs |= regs(ops[0])
    elif i.mem:
        load = ("load" in op or "ds_read" in op) and " lds" not in line
        if load:
            i.vd = regs(ops[0]); rest = ops[1:]
        else: rest = ops
        for o in rest: i.vs |= regs(o); i.ss |= sregs(o)
        i.wide_store = ("store_dwordx4" in op or "store_dwordx3" in op)
        i.data = regs(ops[0]) if op.startswith("buffer_store") else (regs(ops[1]) if op.startswith("global_store") else set())
    return i
def check(text):
    ins = []; bad = []
    for n, l in enumerate(text.split("\n"), 1):
        x = parse(l)
        if x: x.n = n; ins.append(x)
    for k, c in enumerate(ins):
        d = 0
        for j in range(k - 1, max(k - 12, -1), -1):
            p = ins[j]
            if p.op in ("s_branch", "s_endpgm", "s_setpc_b64"): break
            need = 0; why = ""
            def req(n, w):
                nonlocal need, why
                if n > need: need, why = n, w
            if p.valu and c.mfma and p.vd & (c.vs | c.c): req(2, "valu->mfma")
            if p.mfma:
                passes8 = "32x32" in p.op
                if c.mfma:
                    if p.vd & c.vs: req(12 if passes8 else 8, "mfma->mfma AB")
                    if p.vd & c.c and p.vd != c.c: req(10 if passes8 else 6, "mfma->mfma C overlap")
                elif (c.valu or c.mem) and p.vd & (c.vs | c.vd): req(12 if passes8 else 8, "mfma->valu/mem")
                if c.valu and p.c & c.vd: req(7 if passes8 else 3, "mfma C WAR")
            if p.valu and c.op.startswith("v_permlane") and p.vd & c.vs: req(2, "valu->permlane")
            if p.valu and "dpp" in c.op and p.vd & c.vs: req(2, "valu->dpp")
            if p.op.startswith(TRANS) and c.valu and not c.op.startswith(TRANS) and p.vd & c.vs: req(1, "trans->valu")
            if p.valu and c.op.startswith(("v_readlane", "v_readfirstlane")) and p.vd & c.vs: req(1, "valu->readlane")
            if p.valu and c.valu and p.sd & c.ss: req(2, "valu sgpr->valu")
            if p.valu and c.mem and p.sd & c.ss: req(5, "valu sgpr->vmem")
            if p.op.startswith("v_dot2") and (c.valu or c.mfma or c.mem) and c.op != p.op and p.vd & (c.vs | c.vd | c.c): req(3, "dot->other")
            if p.mem and getattr(p, "wide_store", False) and c.valu and p.data & c.vd: req(2, "store data WAR")
            if p.op.startswith("s_") and " m0," in p.line + "," and p.line.split()[1].startswith("m0") and " lds" in c.line: req(1, "m0->lds dma")
            if j == k - 1 and c.mfma and p.op.startswith("v_pk_") and re.search(r"op_sel:\[[01,]*1", p.line): req(1, "pk op_sel -> mfma")
            if need > d: bad.append(f"line {c.n}: {c.line[:70]}  <- line {p.n}: {p.line[:60]}  [{why}: need {need}, have {d}]")
            d += p.states
    return bad
if __name__ == "__main__":
    b = check(open(sys.argv[1]).read())
    print("\n".join(b[:40])); print(len(b), "hazard findings")
```

```python
import re
from hazcheck import parse, TRANS

def need_states(p, c):
    n = 0
    if p.valu and c.mfma and p.vd & (c.vs | c.c): n = max(n, 2)
    if p.mfma:
        if c.mfma:
            if p.vd & c.vs: n = max(n, 8)
            if p.vd & c.c and p.vd != c.c: n = max(n, 6)
        elif (c.valu or c.mem) and p.vd & (c.vs | c.vd): n = max(n, 8)
        if c.valu and p.c & c.vd: n = max(n, 3)
    if p.valu and c.op.startswith("v_permlane") and p.vd & c.vs: n = max(n, 2)
    if p.op.startswith("v_permlane") and c.valu and p.vd & c.vs: n = max(n, 1)
    if p.valu and "dpp" in c.op and p.vd & c.vs: n = max(n, 2)
    if p.op.startswith(TRANS) and (c.valu or c.mem) and not c.op.startswith(TRANS) and p.vd & c.vs: n = max(n, 1)
    if p.valu and c.valu and p.sd & c.ss: n = max(n, 2)
    if p.op.startswith("v_dot2") and (c.valu or c.mfma or c.mem) and c.op != p.op and p.vd & (c.vs | c.vd | c.c): n = max(n, 3)
    if p.mem and getattr(p, "wide_store", False) and c.valu and p.data & c.vd: n = max(n, 2)
    if c.mfma and p.op.startswith("v_pk_") and re.search(r"op_sel:\[[01,]*1", p.line): n = max(n, 1)
    return n

def cost(i):
    if i.mfma: return 8
    if i.op.startswith(TRANS) or i.op.startswith("v_permlane"): return 8
    if i.op.startswith("ds_write_b128"): return 16
    return 4

E32 = ("v_mov_b32", "v_add_f32", "v_sub_f32", "v_mul_f32", "v_max_f32", "v_min_f32", "v_exp_f32", "v_rcp_f32", "v_rsq_f32", "v_and_b32", "v_xor_b32",
       "v_or_b32", "v_lshlrev_b32", "v_lshrrev_b32", "v_add_u32", "v_max_u32", "v_min_u32", "v_permlane16_swap_b32", "v_permlane32_swap_b32", "v_dot2c_f32_bf16")
def size(line):
    op = line.split()[0]
    if op == "s_nop": return 4
    if op in E32 and not re.search(r"0x[0-9a-f]+|(?<![v\[:\w])\d{3,}", line.split(None, 1)[1]): return 4
    return 8

def align(lines):
    out = list(lines); par = 0; k = 0
    while k < len(out):
        if size(out[k]) == 4: par ^= 1; k += 1; continue
        e = k
        while e < len(out) and size(out[e]) == 8: e += 1
        if par and e - k >= 6 and k and out[k-1].startswith("v_"):
            op, rest = out[k-1].split(None, 1); out[k-1] = op + "_e64 " + rest; par = 0
        k = e
    return [".p2align 3"] + out

PKWAIT = 28
def schedule(lines, before=(), urgent=lambda i: 0, tries=4):
    ins = []
    for l in lines:
        for x in l.split("\n"):
            x = x.strip()
            if not x or x.startswith((".p2align", "s_nop")): continue
            i = parse(x); assert i and (i.valu or i.mfma or i.mem), x
            i.rd = i.vs | i.c | {("s", r) for r in i.ss}; i.wr = i.vd | {("s", r) for r in i.sd}
            if "vcc" in x: i.rd |= {("s", "vcc")}
            ins.append(i)
    n = len(ins); preds = [set() for _ in range(n)]; succs = [set() for _ in range(n)]
    for b in range(n):
        for a_ in range(b):
            p, c = ins[a_], ins[b]
            if p.wr & (c.rd | c.wr) or p.rd & c.wr or (p.mem and c.mem):
                preds[b].add(a_); succs[a_].add(b)
    prio = [0] * n
    for k in range(n - 1, -1, -1):
        best = 0
        for s in succs[k]:
            lat = max(cost(ins[k]), 4 * (need_states(ins[k], ins[s]) + 1))
            if ins[k].mfma and ins[s].mfma: lat = 16
            best = max(best, lat + prio[s])
        prio[k] = max(best, cost(ins[k])) + urgent(ins[k])
    hist0 = [h for h in (parse(x) for x in before) if h]
    for i in ins: i.pk = i.op.startswith("v_pk_")
    lastm0 = -100
    tt = 0
    for h in reversed(hist0):
        tt += cost(h) if h.op != "s_nop" else 4 * h.states
        if h.mfma: lastm0 = -tt; break
    import random
    def run(seed, K):
        rnd = random.Random(seed)
        pr = [p + (rnd.random() * 40 if seed else 0) for p in prio]
        hist = list(hist0); left = [len(p) for p in preds]; cand = {k for k in range(n) if not left[k]}
        out = []; t = 0; lastm = lastm0
        def lack(c):
            d = 0; worst = 0
            for p in reversed(hist[-9:]):
                worst = max(worst, need_states(p, c) - d); d += p.states
            return worst
        while cand:
            lk = {k: lack(ins[k]) for k in cand}
            def stall(k):
                c = ins[k]; w = 4 * max(lk[k], 0)
                if c.mfma: w = max(w, lastm + 16 - t)
                if c.pk: w = max(w, lastm + PKWAIT - t)
                return w
            st = {k: stall(k) for k in cand}
            now = [k for k in cand if st[k] <= 0]
            if now:
                mf = [k for k in now if ins[k].mfma]
                cover = sum(1 for k in cand if not ins[k].pk) - 1
                anypk = any(ins[k].pk for k in cand)
                if mf and (cover >= K or not anypk or len(now) == len(mf)): pool = mf
                else: pool = [k for k in now if not ins[k].mfma] or now
                if mf and pool is not mf: pool = [k for k in pool if ins[k].pk] or pool
                k = max(pool, key=lambda k: (pr[k], -k))
            else: k = min(cand, key=lambda k: (st[k], -pr[k]))
            if lk[k] > 0:
                out.append(f"s_nop {lk[k]-1}"); hist.append(parse(out[-1])); t += 4 * lk[k]
            c = ins[k]
            if c.mfma: t = max(t, lastm + 16); lastm = t
            if c.pk: t = max(t, lastm + PKWAIT)
            t += cost(c); out.append(c.line); hist.append(c); cand.remove(k)
            for s_ in succs[k]:
                left[s_] -= 1
                if not left[s_]: cand.add(s_)
        return t, out
    best = min((run(seed, K) for K in (0, 2, 4, 6, 9) for seed in range(tries)), key=lambda x: x[0])
    return align(best[1]), best[0]

def estimate(lines):
    t = 0; lastm = -100
    for l in lines:
        for x in l.split("\n"):
            i = parse(x)
            if not i: continue
            if i.op == "s_nop": t += 4 * i.states; continue
            if i.mfma: t = max(t, lastm + 16); lastm = t
            if i.op.startswith("v_pk_"): t = max(t, lastm + PKWAIT)
            t += cost(i)
    return t
```
